```python
import torch

def _softmax(x, axis=-1):
    return torch.softmax(x, dim=axis)
def _gelu(x):
    return torch.nn.functional.gelu(x, approximate="tanh")
def _silu(x):
    return torch.nn.functional.silu(x)
def _sigmoid(x):
    return torch.sigmoid(x)
def _layernorm(x, axis=-1, eps=1e-5):
    m = x.mean(dim=axis, keepdim=True)
    v = x.var(dim=axis, keepdim=True, unbiased=False)
    return (x - m) / torch.sqrt(v + eps)
def _scatter_add(tgt, idx, src, axis=0):
    return tgt.clone().index_add_(axis, idx, src)
def _segment_sum(src, seg, n):
    out = torch.zeros((n,) + src.shape[1:], dtype=src.dtype)
    return out.index_add_(0, seg, src)
def _pad(x, pw):
    flat = tuple(v for pair in reversed(pw) for v in pair)
    return torch.nn.functional.pad(x, flat)

kernel_name = 'standalone__instancenorm__sampling'

def setup_inputs():

    _w = (lambda a: (lambda t: t.to(torch.bfloat16) if t.is_floating_point() else t)(torch.as_tensor(a)))
    B, C, H, W = 32, 512, 16, 32
    return {
        "x": _w(abs((lambda *s: torch.randn(*s, dtype=torch.bfloat16) * 0.05)(B, C, H, W))),
        "g": _w((lambda *s: torch.randn(*s, dtype=torch.bfloat16) * 0.05)(C) + 1.0),
        "b": _w((lambda *s: torch.randn(*s, dtype=torch.bfloat16) * 0.4)(C)),
    }

def reference(x, g, b):
    mu = x.mean(axis=(-2, -1), keepdims=True)
    var = ((x - mu) ** 2).mean(axis=(-2, -1), keepdims=True)
    xhat = (x - mu) / torch.sqrt(var + 1e-5)
    return xhat * g.reshape(1, -1, 1, 1) + b.reshape(1, -1, 1, 1)
```

```python
import sys, argparse

NAME = "standalone__instancenorm__sampling"
HEADER = """; Kernarg layout for this problem (48 bytes, ptrs only, base s[0:1]):
"""

def gen(waves=4, groups=1, ldflags="", stflags="", mode="pk"):
    rows_per_block = waves * 4 * groups
    nblk = 16384 // rows_per_block
    L = []
    A = L.append
    A(HEADER.rstrip())
    A(f"; @launch grid=({nblk},1,1) block=({waves*64},1,1) lds=0")
    A('.amdgcn_target "amdgcn-amd-amdhsa--gfx950"')
    A(".text")
    A(f".globl {NAME}_kernel")
    A(".p2align 8")
    A(f".type {NAME}_kernel,@function")
    A(f"{NAME}_kernel:")
    A("    s_load_dwordx8 s[4:11], s[0:1], 0      ; x, g, b, out")
    A(f"    s_cmp_ge_u32 s2, {nblk}")
    A("    s_cbranch_scc1 L_done")
    import math
    sh = int(math.log2(rows_per_block))
    A(f"    s_lshl_b32 s3, s2, {sh}")
    A("    v_lshrrev_b32 v1, 4, v0")
    A("    v_add_u32 v1, s3, v1")
    A("    v_and_b32 v2, 15, v0")
    A("    v_lshlrev_b32 v2, 4, v2")
    A("    v_lshl_add_u32 v2, v1, 10, v2")
    A("    v_and_b32 v1, 0x1ff, v1                ; channel")
    A("    v_lshlrev_b32 v1, 1, v1")
    A("    s_mov_b32 s12, 0xffff0000")
    A("    s_mov_b32 s13, 0xbb000000              ; -1/512")
    A("    s_mov_b32 s14, 0x3b000000              ; 1/512")
    A("    s_mov_b32 s15, 0x3727c5ac              ; 1e-5")
    GB = 4
    R0 = GB + 2 * groups
    R0 = (R0 + 3) // 4 * 4
    D0 = R0 + 16 * groups
    T0 = D0 + 32
    gstride = waves * 4
    OFF = [2] + [T0 + 8 + i for i in range(groups - 1)]
    GOFF = [1] + [T0 + 8 + groups - 1 + i for i in range(groups - 1)]
    for gi in range(1, groups):
        A(f"    v_add_u32 v{OFF[gi]}, {gi*gstride*1024}, v2")
    A("    s_waitcnt lgkmcnt(0)")
    for gi in range(groups):
        for j in range(4):
            r = R0 + 16 * gi + 4 * j
            A(f"    global_load_dwordx4 v[{r}:{r+3}], v{OFF[gi]}, s[4:5] offset:{256*j} {ldflags}".rstrip())
        A(f"    global_load_ushort v{GB+2*gi}, v1, s[6:7] offset:{gi*gstride*2}")
        A(f"    global_load_ushort v{GB+2*gi+1}, v1, s[8:9] offset:{gi*gstride*2}")
    nvm_per_group = 6
    for gi in range(groups):
        later = (groups - 1 - gi) * 6 + gi * 4
        R = R0 + 16 * gi
        a0, a1 = T0, T0 + 2
        for j in range(4):
            A(f"    s_waitcnt vmcnt({later + 2 + (3 - j)})")
            for k in range(4):
                r = R + 4 * j + k
                d = D0 + 2 * (4 * j + k)
                A(f"    v_lshlrev_b32 v{d}, 16, v{r}")
                A(f"    v_and_b32 v{d+1}, s12, v{r}")
            for k in range(4):
                d = D0 + 2 * (4 * j + k)
                acc = a0 if k % 2 == 0 else a1
                if j == 0 and k < 2:
                    continue
                if j == 0 and k >= 2:
                    dprev = D0 + 2 * (k - 2)
                    A(f"    v_pk_add_f32 v[{acc}:{acc+1}], v[{dprev}:{dprev+1}], v[{d}:{d+1}]")
                else:
                    A(f"    v_pk_add_f32 v[{acc}:{acc+1}], v[{acc}:{acc+1}], v[{d}:{d+1}]")
        A(f"    v_pk_add_f32 v[{a0}:{a0+1}], v[{a0}:{a0+1}], v[{a1}:{a1+1}]")
        A(f"    v_add_f32 v{a0}, v{a0}, v{a0+1}")
        for rot in (8, 4, 2, 1):
            A("    s_nop 1")
            A(f"    v_add_f32_dpp v{a0}, v{a0}, v{a0} row_ror:{rot} row_mask:0xf bank_mask:0xf")
        m = T0 + 4
        A(f"    v_mul_f32 v{m}, s13, v{a0}            ; -mean")
        for i in range(16):
            d = D0 + 2 * i
            A(f"    v_pk_add_f32 v[{d}:{d+1}], v[{d}:{d+1}], v[{m}:{m+1}] op_sel_hi:[1,0]")
        for i in range(16):
            d = D0 + 2 * i
            acc = a0 if i % 2 == 0 else a1
            if i < 2:
                A(f"    v_pk_mul_f32 v[{acc}:{acc+1}], v[{d}:{d+1}], v[{d}:{d+1}]")
            else:
                A(f"    v_pk_fma_f32 v[{acc}:{acc+1}], v[{d}:{d+1}], v[{d}:{d+1}], v[{acc}:{acc+1}]")
        A(f"    v_pk_add_f32 v[{a0}:{a0+1}], v[{a0}:{a0+1}], v[{a1}:{a1+1}]")
        A(f"    v_add_f32 v{a0}, v{a0}, v{a0+1}")
        for rot in (8, 4, 2, 1):
            A("    s_nop 1")
            A(f"    v_add_f32_dpp v{a0}, v{a0}, v{a0} row_ror:{rot} row_mask:0xf bank_mask:0xf")
        A(f"    v_mov_b32 v{a1}, s15")
        A(f"    v_fmac_f32 v{a1}, s14, v{a0}")
        A(f"    v_rsq_f32 v{a1}, v{a1}")
        A(f"    s_waitcnt vmcnt({later})")
        g, b = GB + 2 * gi, GB + 2 * gi + 1
        sc, bb = T0 + 4, T0 + 6
        A(f"    v_lshlrev_b32 v{g}, 16, v{g}")
        A(f"    v_lshlrev_b32 v{bb}, 16, v{b}")
        A(f"    v_mul_f32 v{sc}, v{a1}, v{g}")
        for j in range(4):
            for k in range(4):
                i = 4 * j + k
                d = D0 + 2 * i
                A(f"    v_pk_fma_f32 v[{d}:{d+1}], v[{d}:{d+1}], v[{sc}:{sc+1}], v[{bb}:{bb+1}] op_sel_hi:[1,0,0]")
            for k in range(4):
                i = 4 * j + k
                d = D0 + 2 * i
                A(f"    v_cvt_pk_bf16_f32 v{R+i}, v{d}, v{d+1}")
            r = R + 4 * j
            A(f"    global_store_dwordx4 v{OFF[gi]}, v[{r}:{r+3}], s[10:11] offset:{256*j} {stflags}".rstrip())
    A("L_done:")
    A("    s_endpgm")
    nv = T0 + 8 + 2 * (groups - 1)
    acc = (nv + 3) // 4 * 4
    A('.section .rodata,"a"')
    A(".p2align 6")
    A(f".amdhsa_kernel {NAME}_kernel")
    A(f"  .amdhsa_next_free_vgpr {nv}")
    A("  .amdhsa_next_free_sgpr 24")
    A(f"  .amdhsa_accum_offset {acc}")
    A("  .amdhsa_group_segment_fixed_size 0")
    A("  .amdhsa_kernarg_size 48")
    A("  .amdhsa_user_sgpr_count 2")
    A("  .amdhsa_user_sgpr_kernarg_segment_ptr 1")
    A("  .amdhsa_system_sgpr_workgroup_id_x 1")
    A("  .amdhsa_float_denorm_mode_32 3")
    A(".end_amdhsa_kernel")
    return "\n".join(L) + "\n"

if __name__ == "__main__":
    ap = argparse.ArgumentParser()
    ap.add_argument("-w", type=int, default=4)
    ap.add_argument("-g", type=int, default=1)
    ap.add_argument("--ld", default="")
    ap.add_argument("--st", default="")
    ap.add_argument("-o", default="/dev/stdout")
    a = ap.parse_args()
    open(a.o, "w").write(gen(a.w, a.g, a.ld, a.st))
```

```python
import sys
sys.path.insert(0,'work')
from gen import gen
V='variants/'

def add_spin(src, T, wait_stores=True):
    src = src.replace("    s_load_dwordx8 s[4:11], s[0:1], 0", "    s_memrealtime s[20:21]\n    s_load_dwordx8 s[4:11], s[0:1], 0",1)
    tail = f"""    s_waitcnt vmcnt(0)
L_spin:
    s_memrealtime s[22:23]
    s_waitcnt lgkmcnt(0)
    s_sub_u32 s22, s22, s20
    s_cmp_lt_u32 s22, {T}
    s_cbranch_scc1 L_spin
L_done:"""
    src = src.replace("L_done:", tail, 1)
    src = src.replace("next_free_sgpr 24","next_free_sgpr 40")
    return src

def add_dbg(src):
    src = src.replace("    s_load_dwordx8 s[4:11], s[0:1], 0", "    s_memrealtime s[20:21]\n    s_load_dwordx8 s[4:11], s[0:1], 0\n    s_load_dwordx4 s[32:35], s[0:1], 32",1)
    src = src.replace("    s_waitcnt lgkmcnt(0)\n", "    s_waitcnt lgkmcnt(0)\n    s_memrealtime s[22:23]\n",1)
    lines = src.split("\n")
    out=[]; nw=0
    for l in lines:
        out.append(l)
        if l.strip().startswith("s_waitcnt vmcnt"):
            nw+=1
            if nw==1: out.append("    s_memrealtime s[24:25]")
            if nw==4: out.append("    s_memrealtime s[26:27]")
    src="\n".join(out)
    tail = """    s_memrealtime s[30:31]
    s_waitcnt vmcnt(0)
    s_memrealtime s[28:29]
    s_waitcnt lgkmcnt(0)
    v_cmp_eq_u32 vcc, 0, v0
    s_and_saveexec_b64 s[36:37], vcc
    s_cbranch_execz L_done
    v_mov_b32 v1, 0
"""
    for k,s in enumerate([20,22,24,26,30,28]):
        tail += f"    v_mov_b32 v2, s{s}\n    v_not_b32 v3, v2\n    global_atomic_umax v1, v2, s[32:33] offset:{8*k}\n    global_atomic_umax v1, v3, s[32:33] offset:{8*k+4}\n"
    tail += "L_done:"
    src = src.replace("L_done:", tail, 1)
    src = src.replace("next_free_sgpr 24","next_free_sgpr 40")
    return src

def add_ws(src):
    src = add_dbg(src)
    i = src.index("    v_cmp_eq_u32 vcc, 0, v0")
    j = src.index("L_done:\n")
    tail = """    v_and_b32 v1, 63, v0
    v_cmp_eq_u32 vcc, 0, v1
    s_and_saveexec_b64 s[36:37], vcc
    s_cbranch_execz L_done
    v_lshrrev_b32 v1, 6, v0
    s_lshl_b32 s38, s2, 4
    v_add_u32 v1, s38, v1
    v_lshlrev_b32 v1, 5, v1
    s_getreg_b32 s38, hwreg(HW_REG_HW_ID)
    s_getreg_b32 s39, hwreg(HW_REG_XCC_ID)
    v_mov_b32 v8, s20
    v_mov_b32 v9, s22
    v_mov_b32 v10, s24
    v_mov_b32 v11, s26
    v_mov_b32 v12, s30
    v_mov_b32 v13, s28
    v_mov_b32 v14, s38
    v_mov_b32 v15, s39
    global_store_dwordx4 v1, v[8:11], s[34:35]
    global_store_dwordx4 v1, v[12:15], s[34:35] offset:16
"""
    return src[:i]+tail+src[j:]

if __name__=="__main__":
    base = gen(4,1,"","")
    open(V+"spin30.s","w").write(add_spin(base,3000))
    open(V+"spin10.s","w").write(add_spin(base,1000))
    open(V+"spin6.s","w").write(add_spin(base,600))
    open(V+"dbg_w4g4.s","w").write(add_dbg(gen(4,4,"","")))
    open(V+"dbg_w4g1.s","w").write(add_dbg(gen(4,1,"","")))
    open(V+"ws_w4g1.s","w").write(add_ws(gen(4,1,"","")))
    open(V+"ws_w4g1nt.s","w").write(add_ws(gen(4,1,"nt","nt")))
```

```python
import sys
sys.path.insert(0,'work')
from gen import gen
from diag import add_dbg
V='variants/'

def add_amp(src, sreg, K, neg=False, base=4000):
    src = add_dbg(src)
    i = src.index("    v_cmp_eq_u32 vcc, 0, v0")
    j = src.index("L_done:\n")
    tail = f"""L_sp1:
    s_memrealtime s[36:37]
    s_waitcnt lgkmcnt(0)
    s_sub_u32 s36, s36, s20
    s_cmp_lt_u32 s36, 1200
    s_cbranch_scc1 L_sp1
    v_mov_b32 v1, 0
    v_mov_b32 v2, s20
    v_not_b32 v3, v2
    v_cmp_eq_u32 vcc, 0, v0
    s_and_saveexec_b64 s[38:39], vcc
    s_cbranch_execz L_noat
    global_atomic_umax v1, v3, s[32:33]
L_noat:
    s_mov_b64 exec, s[38:39]
L_sp2:
    s_memrealtime s[36:37]
    s_waitcnt lgkmcnt(0)
    s_sub_u32 s36, s36, s20
    s_cmp_lt_u32 s36, 3000
    s_cbranch_scc1 L_sp2
    global_load_dword v3, v1, s[32:33] sc0 sc1
    s_waitcnt vmcnt(0)
    v_not_b32 v3, v3
    s_nop 1
    v_readfirstlane_b32 s40, v3     ; tmin
    s_nop 3
    s_sub_u32 s41, s{sreg}, s40
    s_max_i32 s41, s41, 0
    s_min_u32 s41, s41, 1000
    s_mul_i32 s41, s41, {K}
"""
    if neg:
        tail += f"    s_sub_u32 s41, {base + 1000*K}, s41\n"
    else:
        tail += f"    s_add_u32 s41, s41, {base}\n"
    tail += """L_sp3:
    s_memrealtime s[36:37]
    s_waitcnt lgkmcnt(0)
    s_sub_u32 s36, s36, s40
    s_cmp_lt_u32 s36, s41
    s_cbranch_scc1 L_sp3
"""
    src = src[:i]+tail+src[j:]
    return src.replace("next_free_sgpr 40","next_free_sgpr 48")

if __name__=="__main__":
    b = gen(4,1,"nt","nt")
    open(V+"amp_0.s","w").write(add_amp(b,20,0))
    open(V+"amp_start.s","w").write(add_amp(b,20,10))
    open(V+"amp_karg.s","w").write(add_amp(b,22,10))
    open(V+"amp_all4.s","w").write(add_amp(b,26,10))
    open(V+"amp_done.s","w").write(add_amp(b,28,10))
    open(V+"amp_minfirst.s","w").write(add_amp(b,24,10,neg=True))
```

```python
import math
from gen import NAME, HEADER

class Cfg:
    def __init__(s, waves=4, groups=2, depth=1, ld="", st="", layout="blk", instr=False, nocompute=False, noload=False, nostore=False, early=True):
        s.__dict__.update(locals()); del s.__dict__['s']

def gen(c):
    W, G, D = c.waves, c.groups, min(c.depth, c.groups)
    rows_per_block = W * 4 * G
    nblk = 16384 // rows_per_block
    L = []; A = L.append
    A(HEADER.rstrip())
    A(f"; @launch grid=({nblk},1,1) block=({W*64},1,1) lds=0")
    A('.amdgcn_target "amdgcn-amd-amdhsa--gfx950"')
    A(".text"); A(f".globl {NAME}_kernel"); A(".p2align 8"); A(f".type {NAME}_kernel,@function")
    A(f"{NAME}_kernel:")
    if c.instr:
        A("    s_memrealtime s[20:21]")
        A("    s_load_dwordx4 s[32:35], s[0:1], 32")
    A("    s_load_dwordx8 s[4:11], s[0:1], 0      ; x, g, b, out")
    A(f"    s_cmp_ge_u32 s2, {nblk}")
    A("    s_cbranch_scc1 L_done")
    if c.layout == "blk":
        sh = int(math.log2(rows_per_block)); gstride = W * 4
    elif c.layout == "grid":
        sh = int(math.log2(W * 4)); gstride = 16384 // G
    A(f"    s_lshl_b32 s3, s2, {sh}")
    A("    v_lshrrev_b32 v1, 4, v0")
    A("    v_add_u32 v1, s3, v1")
    A("    v_and_b32 v2, 15, v0")
    A("    v_lshlrev_b32 v2, 4, v2")
    A("    v_lshl_add_u32 v2, v1, 10, v2")
    A("    v_and_b32 v1, 0x1ff, v1")
    A("    v_lshlrev_b32 v1, 1, v1")
    A("    s_mov_b32 s12, 0xffff0000")
    A("    s_mov_b32 s13, 0xbb000000              ; -1/512")
    A("    s_mov_b32 s14, 0x3b000000              ; 1/512")
    A("    s_mov_b32 s15, 0x3727c5ac              ; 1e-5")
    NB = min(G, D + 1) if c.early else D
    same_ch = (gstride % 512 == 0)
    NGB = 1 if same_ch else G
    GB = 4
    R0 = (GB + 2 * NGB + 3) // 4 * 4
    D0 = R0 + 16 * NB
    T0 = D0 + 32
    OFF0 = T0 + 8
    OFF = [2] + [OFF0 + i for i in range(G - 1)]
    for gi in range(1, G):
        A(f"    v_add_u32 v{OFF[gi]}, {gi*gstride*1024}, v2")
    A("    s_waitcnt lgkmcnt(0)")
    if c.instr: A("    s_memrealtime s[22:23]")
    q = []
    def issue_loads(gi):
        R = R0 + 16 * (gi % NB)
        for j in range(4):
            r = R + 4 * j
            if not c.noload:
                A(f"    global_load_dwordx4 v[{r}:{r+3}], v{OFF[gi]}, s[4:5] offset:{256*j} {c.ld}".rstrip())
                q.append(("x", gi, j))
    def wait_for(tag):
        if tag not in q: return
        i = q.index(tag)
        n = len(q) - 1 - i
        A(f"    s_waitcnt vmcnt({n})")
        del q[:i+1]
    issue_loads(0)
    for gi in range(NGB):
        A(f"    global_load_ushort v{GB+2*gi}, v1, s[6:7] offset:{gi*gstride*2}")
        A(f"    global_load_ushort v{GB+2*gi+1}, v1, s[8:9] offset:{gi*gstride*2}")
        q.append(("g", gi)); q.append(("b", gi))
    for gi in range(1, D): issue_loads(gi)
    for gi in range(G):
        R = R0 + 16 * (gi % NB)
        a0, a1 = T0, T0 + 2
        if c.early and gi + D < G:
            wait_for(("x", gi, 0))
            issue_loads(gi + D)
        for j in range(4):
            wait_for(("x", gi, j))
            if c.instr and gi == 0 and j == 0: A("    s_memrealtime s[24:25]")
            if c.instr and gi == G-1 and j == 3: A("    s_memrealtime s[26:27]")
            if c.nocompute: continue
            for k in range(4):
                r = R + 4 * j + k; d = D0 + 2 * (4 * j + k)
                A(f"    v_lshlrev_b32 v{d}, 16, v{r}")
                A(f"    v_and_b32 v{d+1}, s12, v{r}")
            for k in range(4):
                d = D0 + 2 * (4 * j + k)
                acc = a0 if k % 2 == 0 else a1
                if j == 0 and k < 2: continue
                if j == 0:
                    dp = D0 + 2 * (k - 2)
                    A(f"    v_pk_add_f32 v[{acc}:{acc+1}], v[{dp}:{dp+1}], v[{d}:{d+1}]")
                else:
                    A(f"    v_pk_add_f32 v[{acc}:{acc+1}], v[{acc}:{acc+1}], v[{d}:{d+1}]")
        if not c.nocompute:
            A(f"    v_pk_add_f32 v[{a0}:{a0+1}], v[{a0}:{a0+1}], v[{a1}:{a1+1}]")
            A(f"    v_add_f32 v{a0}, v{a0}, v{a0+1}")
            for rot in (8, 4, 2, 1):
                A("    s_nop 1")
                A(f"    v_add_f32_dpp v{a0}, v{a0}, v{a0} row_ror:{rot} row_mask:0xf bank_mask:0xf")
            m = T0 + 4
            A(f"    v_mul_f32 v{m}, s13, v{a0}")
            for i in range(16):
                d = D0 + 2 * i
                A(f"    v_pk_add_f32 v[{d}:{d+1}], v[{d}:{d+1}], v[{m}:{m+1}] op_sel_hi:[1,0]")
            for i in range(16):
                d = D0 + 2 * i
                acc = a0 if i % 2 == 0 else a1
                if i < 2: A(f"    v_pk_mul_f32 v[{acc}:{acc+1}], v[{d}:{d+1}], v[{d}:{d+1}]")
                else: A(f"    v_pk_fma_f32 v[{acc}:{acc+1}], v[{d}:{d+1}], v[{d}:{d+1}], v[{acc}:{acc+1}]")
            A(f"    v_pk_add_f32 v[{a0}:{a0+1}], v[{a0}:{a0+1}], v[{a1}:{a1+1}]")
            A(f"    v_add_f32 v{a0}, v{a0}, v{a0+1}")
            for rot in (8, 4, 2, 1):
                A("    s_nop 1")
                A(f"    v_add_f32_dpp v{a0}, v{a0}, v{a0} row_ror:{rot} row_mask:0xf bank_mask:0xf")
            A(f"    v_mov_b32 v{a1}, s15")
            A(f"    v_fmac_f32 v{a1}, s14, v{a0}")
            A(f"    v_rsq_f32 v{a1}, v{a1}")
            gg = gi % NGB
            g, b = GB + 2 * gg, GB + 2 * gg + 1
            first_use = ("b", gg) in q or gi < NGB
            wait_for(("b", gg))
            sc, bb = T0 + 4, T0 + 6
            A(f"    v_lshlrev_b32 v{sc}, 16, v{g}")
            A(f"    v_lshlrev_b32 v{bb}, 16, v{b}")
            A(f"    v_mul_f32 v{sc}, v{a1}, v{sc}")
        for j in range(4):
            if not c.nocompute:
                for k in range(4):
                    d = D0 + 2 * (4 * j + k)
                    A(f"    v_pk_fma_f32 v[{d}:{d+1}], v[{d}:{d+1}], v[{sc}:{sc+1}], v[{bb}:{bb+1}] op_sel_hi:[1,0,0]")
                for k in range(4):
                    i = 4 * j + k; d = D0 + 2 * i
                    A(f"    v_cvt_pk_bf16_f32 v{R+i}, v{d}, v{d+1}")
            r = R + 4 * j
            if not c.nostore:
                A(f"    global_store_dwordx4 v{OFF[gi]}, v[{r}:{r+3}], s[10:11] offset:{256*j} {c.st}".rstrip())
                q.append(("s", gi, j))
        if (not c.early) and gi + D < G:
            A("    s_nop 1")
            issue_loads(gi + D)
    if c.instr:
        A("""    s_memrealtime s[30:31]
    s_waitcnt vmcnt(0)
    s_memrealtime s[28:29]
    s_waitcnt lgkmcnt(0)
    v_and_b32 v1, 63, v0
    v_cmp_eq_u32 vcc, 0, v1
    s_and_saveexec_b64 s[36:37], vcc
    s_cbranch_execz L_done
    v_lshrrev_b32 v1, 6, v0
    s_lshl_b32 s38, s2, 4
    v_add_u32 v1, s38, v1
    v_lshlrev_b32 v1, 5, v1
    s_getreg_b32 s38, hwreg(HW_REG_HW_ID)
    s_getreg_b32 s39, hwreg(HW_REG_XCC_ID)
    v_mov_b32 v8, s20
    v_mov_b32 v9, s22
    v_mov_b32 v10, s24
    v_mov_b32 v11, s26
    v_mov_b32 v12, s30
    v_mov_b32 v13, s28
    v_mov_b32 v14, s38
    v_mov_b32 v15, s39
    global_store_dwordx4 v1, v[8:11], s[34:35]
    global_store_dwordx4 v1, v[12:15], s[34:35] offset:16""")
    A("L_done:")
    A("    s_endpgm")
    nv = max(OFF0 + G - 1, 16)
    acc = (nv + 3) // 4 * 4
    A('.section .rodata,"a"'); A(".p2align 6")
    A(f".amdhsa_kernel {NAME}_kernel")
    A(f"  .amdhsa_next_free_vgpr {nv}")
    A(f"  .amdhsa_next_free_sgpr {40 if c.instr else 24}")
    A(f"  .amdhsa_accum_offset {acc}")
    A("  .amdhsa_group_segment_fixed_size 0")
    A("  .amdhsa_kernarg_size 48")
    A("  .amdhsa_user_sgpr_count 2")
    A("  .amdhsa_user_sgpr_kernarg_segment_ptr 1")
    A("  .amdhsa_system_sgpr_workgroup_id_x 1")
    A("  .amdhsa_float_denorm_mode_32 3")
    A(".end_amdhsa_kernel")
    return "\n".join(L) + "\n"
```

```python
import sys, subprocess
sys.path.insert(0,'work')
from gen2 import gen, Cfg
V='variants/'
s=gen(Cfg(4,1,1))
tail = """    s_cmp_lg_u32 s2, 0
    s_cbranch_scc1 L_done
    v_readfirstlane_b32 s16, v0
    s_nop 3
    s_cmp_lg_u32 s16, 0
    s_cbranch_scc1 L_done
    s_load_dwordx2 s[32:33], s[0:1], 32
    s_memrealtime s[20:21]
    s_waitcnt vmcnt(0) lgkmcnt(0)
L_sp1:
    s_memrealtime s[36:37]
    s_waitcnt lgkmcnt(0)
    s_sub_u32 s36, s36, s20
    s_cmp_lt_u32 s36, 3000
    s_cbranch_scc1 L_sp1
    v_mov_b32 v3, 0
"""
def probe(base, off, dst):
    return f"""    v_mov_b32 v4, {off}
    s_memtime s[40:41]
    s_waitcnt lgkmcnt(0)
    global_load_dword v5, v4, {base} sc1
    s_waitcnt vmcnt(0)
    s_memtime s[42:43]
    s_waitcnt lgkmcnt(0)
    s_sub_u32 s42, s42, s40
    s_min_u32 s{dst}, s{dst}, s42
"""
for bi,base in enumerate(["s[4:5]","s[10:11]"]):
    tail += f"    s_mov_b32 s{50+bi}, 0\n"
    for p in range(8):
        tail += "    s_mov_b32 s44, 0xffff\n    s_mov_b32 s45, 0xffff\n"
        for k in (1,2,3,5,6):
            tail += probe(base, p*(2<<20)+k*16384+ 128*k, 44)
            tail += probe(base, p*(2<<20)+k*16384+8192+128*k, 45)
        tail += f"    s_cmp_gt_u32 s44, s45\n    s_cselect_b32 s46, {1<<p}, 0\n    s_or_b32 s{50+bi}, s{50+bi}, s46\n"
        if p in (0,1,7):
            idx = 4 + bi*6 + {0:0,1:2,7:4}[p]
            tail += f"    v_mov_b32 v6, s44\n    v_mov_b32 v7, s45\n    global_store_dwordx2 v3, v[6:7], s[32:33] offset:{idx*4}\n    s_nop 1\n"
tail += """    s_getreg_b32 s52, hwreg(HW_REG_XCC_ID)
    v_mov_b32 v8, s50
    v_mov_b32 v9, s51
    s_lshr_b32 s53, s4, 20
    s_lshr_b32 s54, s10, 20
    s_lshl_b32 s54, s54, 16
    s_or_b32 s53, s53, s54
    v_mov_b32 v10, s52
    v_mov_b32 v11, s53
    global_store_dwordx4 v3, v[8:11], s[32:33]
L_done:"""
s=s.replace("L_done:",tail,1).replace("next_free_sgpr 24","next_free_sgpr 64")
open(V+"probe.s","w").write(s)
r=subprocess.run(["python3","mkco.py",V+"probe.s"],capture_output=True,text=True); print(r.stdout,r.stderr)
```

```python
import math
from gen import NAME, HEADER

class Cfg:
    def __init__(s, waves=4, groups=2, depth=1, ld="", st="", layout="blk", instr=False, nocompute=False, noload=False, nostore=False, early=True, flip=0, wb=None, wbflags="sc1", wbsel="all", stlast=None, stv=None):
        s.__dict__.update(locals()); del s.__dict__['s']

def gen(c):
    W, G, D = c.waves, c.groups, min(c.depth, c.groups)
    rows_per_block = W * 4 * G
    nblk = 16384 // rows_per_block
    L = []; A = L.append
    A(HEADER.rstrip())
    A(f"; @launch grid=({nblk},1,1) block=({W*64},1,1) lds=0")
    A('.amdgcn_target "amdgcn-amd-amdhsa--gfx950"')
    A(".text"); A(f".globl {NAME}_kernel"); A(".p2align 8"); A(f".type {NAME}_kernel,@function")
    A(f"{NAME}_kernel:")
    if c.instr:
        A("    s_memrealtime s[20:21]")
        A("    s_load_dwordx4 s[32:35], s[0:1], 32")
    A("    s_load_dwordx8 s[4:11], s[0:1], 0      ; x, g, b, out")
    A(f"    s_cmp_ge_u32 s2, {nblk}")
    A("    s_cbranch_scc1 L_done")
    if c.layout == "blk":
        sh = int(math.log2(rows_per_block)); gstride = W * 4
    elif c.layout == "grid":
        sh = int(math.log2(W * 4)); gstride = 16384 // G
    elif c.layout == "numa":
        gstride = W * 4 * 2
        A("    s_lshr_b32 s3, s2, 3")
        A("    s_lshl_b32 s3, s3, 2")
        A("    s_and_b32 s16, s2, 3")
        A("    s_or_b32 s3, s3, s16")
        A(f"    s_lshl_b32 s3, s3, {int(math.log2(rows_per_block*2))}")
        A("    s_getreg_b32 s16, hwreg(HW_REG_XCC_ID)")
        A("    s_lshr_b32 s16, s16, 2")
        A("    s_lshr_b32 s17, s3, 11")
        A("    s_xor_b32 s16, s16, s17")
        if c.flip: A("    s_xor_b32 s16, s16, 1")
        A("    v_lshrrev_b32 v1, 4, v0            ; r'")
        A("    v_lshrrev_b32 v3, 3, v1")
        A("    v_and_b32 v1, 7, v1")
        A("    v_lshl_add_u32 v1, v3, 4, v1")
        A("    s_waitcnt lgkmcnt(0)")
        A("    s_xor_b32 s16, s16, s32")
        A("    s_and_b32 s16, s16, 1")
        A("    s_lshl_b32 s16, s16, 3")
        A("    s_add_u32 s3, s3, s16")
        A("    v_add_u32 v1, s3, v1")
    elif c.layout == "numag":
        gstride = 16384 // G
        A("    s_lshr_b32 s3, s2, 3")
        A("    s_lshl_b32 s3, s3, 2")
        A("    s_and_b32 s16, s2, 3")
        A("    s_or_b32 s3, s3, s16")
        A(f"    s_lshl_b32 s3, s3, {int(math.log2(W*4*2))}")
        A("    s_getreg_b32 s16, hwreg(HW_REG_XCC_ID)")
        A("    s_lshr_b32 s16, s16, 2")
        A("    s_lshr_b32 s17, s3, 11")
        A("    s_xor_b32 s16, s16, s17")
        if c.flip: A("    s_xor_b32 s16, s16, 1")
        A("    v_lshrrev_b32 v1, 4, v0            ; r'")
        A("    v_lshrrev_b32 v3, 3, v1")
        A("    v_and_b32 v1, 7, v1")
        A("    v_lshl_add_u32 v1, v3, 4, v1")
        A("    s_waitcnt lgkmcnt(0)")
        A("    s_xor_b32 s16, s16, s32")
        A("    s_and_b32 s16, s16, 1")
        A("    s_lshl_b32 s16, s16, 3")
        A("    s_add_u32 s3, s3, s16")
        A("    v_add_u32 v1, s3, v1")
    if c.layout.startswith("numa"):
        pass
    else:
        A(f"    s_lshl_b32 s3, s2, {sh}")
        A("    v_lshrrev_b32 v1, 4, v0")
        A("    v_add_u32 v1, s3, v1")
    A("    v_and_b32 v2, 15, v0")
    A("    v_lshlrev_b32 v2, 4, v2")
    A("    v_lshl_add_u32 v2, v1, 10, v2")
    A("    v_and_b32 v1, 0x1ff, v1")
    A("    v_lshlrev_b32 v1, 1, v1")
    A("    s_mov_b32 s12, 0xffff0000")
    A("    s_mov_b32 s13, 0xbb000000              ; -1/512")
    A("    s_mov_b32 s14, 0x3b000000              ; 1/512")
    A("    s_mov_b32 s15, 0x3727c5ac              ; 1e-5")
    NB = min(G, D + 1) if c.early else D
    same_ch = (gstride % 512 == 0)
    NGB = 1 if same_ch else G
    GB = 4
    R0 = (GB + 2 * NGB + 3) // 4 * 4
    D0 = R0 + 16 * NB
    T0 = D0 + 32
    OFF0 = T0 + 8
    OFF = [2] + [OFF0 + i for i in range(G - 1)]
    for gi in range(1, G):
        A(f"    v_add_u32 v{OFF[gi]}, {gi*gstride*1024}, v2")
    A("    s_waitcnt lgkmcnt(0)")
    if c.instr: A("    s_memrealtime s[22:23]")
    q = []
    def issue_loads(gi):
        R = R0 + 16 * (gi % NB)
        for j in range(4):
            r = R + 4 * j
            if not c.noload:
                A(f"    global_load_dwordx4 v[{r}:{r+3}], v{OFF[gi]}, s[4:5] offset:{256*j} {c.ld}".rstrip())
                q.append(("x", gi, j))
    def wait_for(tag):
        if tag not in q: return
        i = q.index(tag)
        n = len(q) - 1 - i
        A(f"    s_waitcnt vmcnt({n})")
        del q[:i+1]
    def emit_wb():
        if c.wbsel != "all":
            A("    v_readfirstlane_b32 s18, v0")
            A("    s_nop 3")
            A("    s_cmp_lg_u32 s18, 0")
            A("    s_cbranch_scc1 L_nowb")
            if c.wbsel.startswith("xcd"):
                n = int(c.wbsel[3:] or 1) * 8
                A(f"    s_cmp_lt_u32 s2, {nblk - n}")
                A("    s_cbranch_scc1 L_nowb")
        A(f"    buffer_wbl2 {c.wbflags}")
        if c.wbsel != "all":
            A("L_nowb:")
    issue_loads(0)
    for gi in range(NGB):
        A(f"    global_load_ushort v{GB+2*gi}, v1, s[6:7] offset:{gi*gstride*2}")
        A(f"    global_load_ushort v{GB+2*gi+1}, v1, s[8:9] offset:{gi*gstride*2}")
        q.append(("g", gi)); q.append(("b", gi))
    for gi in range(1, D): issue_loads(gi)
    for gi in range(G):
        R = R0 + 16 * (gi % NB)
        a0, a1 = T0, T0 + 2
        if c.early and gi + D < G:
            wait_for(("x", gi, 0))
            issue_loads(gi + D)
        for j in range(4):
            wait_for(("x", gi, j))
            if c.wb and c.wb == (gi, "pre") and j == 3: emit_wb()
            if c.instr and gi == 0 and j == 0: A("    s_memrealtime s[24:25]")
            if c.instr and gi == G-1 and j == 3: A("    s_memrealtime s[26:27]")
            if c.nocompute: continue
            for k in range(4):
                r = R + 4 * j + k; d = D0 + 2 * (4 * j + k)
                A(f"    v_lshlrev_b32 v{d}, 16, v{r}")
                A(f"    v_and_b32 v{d+1}, s12, v{r}")
            for k in range(4):
                d = D0 + 2 * (4 * j + k)
                acc = a0 if k % 2 == 0 else a1
                if j == 0 and k < 2: continue
                if j == 0:
                    dp = D0 + 2 * (k - 2)
                    A(f"    v_pk_add_f32 v[{acc}:{acc+1}], v[{dp}:{dp+1}], v[{d}:{d+1}]")
                else:
                    A(f"    v_pk_add_f32 v[{acc}:{acc+1}], v[{acc}:{acc+1}], v[{d}:{d+1}]")
        if not c.nocompute:
            A(f"    v_pk_add_f32 v[{a0}:{a0+1}], v[{a0}:{a0+1}], v[{a1}:{a1+1}]")
            A(f"    v_add_f32 v{a0}, v{a0}, v{a0+1}")
            for rot in (8, 4, 2, 1):
                A("    s_nop 1")
                A(f"    v_add_f32_dpp v{a0}, v{a0}, v{a0} row_ror:{rot} row_mask:0xf bank_mask:0xf")
            m = T0 + 4
            A(f"    v_mul_f32 v{m}, s13, v{a0}")
            for i in range(16):
                d = D0 + 2 * i
                A(f"    v_pk_add_f32 v[{d}:{d+1}], v[{d}:{d+1}], v[{m}:{m+1}] op_sel_hi:[1,0]")
            for i in range(16):
                d = D0 + 2 * i
                acc = a0 if i % 2 == 0 else a1
                if i < 2: A(f"    v_pk_mul_f32 v[{acc}:{acc+1}], v[{d}:{d+1}], v[{d}:{d+1}]")
                else: A(f"    v_pk_fma_f32 v[{acc}:{acc+1}], v[{d}:{d+1}], v[{d}:{d+1}], v[{acc}:{acc+1}]")
            A(f"    v_pk_add_f32 v[{a0}:{a0+1}], v[{a0}:{a0+1}], v[{a1}:{a1+1}]")
            A(f"    v_add_f32 v{a0}, v{a0}, v{a0+1}")
            for rot in (8, 4, 2, 1):
                A("    s_nop 1")
                A(f"    v_add_f32_dpp v{a0}, v{a0}, v{a0} row_ror:{rot} row_mask:0xf bank_mask:0xf")
            A(f"    v_mov_b32 v{a1}, s15")
            A(f"    v_fmac_f32 v{a1}, s14, v{a0}")
            A(f"    v_rsq_f32 v{a1}, v{a1}")
            gg = gi % NGB
            g, b = GB + 2 * gg, GB + 2 * gg + 1
            first_use = ("b", gg) in q or gi < NGB
            wait_for(("b", gg))
            sc, bb = T0 + 4, T0 + 6
            A(f"    v_lshlrev_b32 v{sc}, 16, v{g}")
            A(f"    v_lshlrev_b32 v{bb}, 16, v{b}")
            A(f"    v_mul_f32 v{sc}, v{a1}, v{sc}")
        for j in range(4):
            if not c.nocompute:
                for k in range(4):
                    d = D0 + 2 * (4 * j + k)
                    A(f"    v_pk_fma_f32 v[{d}:{d+1}], v[{d}:{d+1}], v[{sc}:{sc+1}], v[{bb}:{bb+1}] op_sel_hi:[1,0,0]")
                for k in range(4):
                    i = 4 * j + k; d = D0 + 2 * i
                    A(f"    v_cvt_pk_bf16_f32 v{R+i}, v{d}, v{d+1}")
            r = R + 4 * j
            if not c.nostore:
                A(f"    global_store_dwordx4 v{OFF[gi]}, v[{r}:{r+3}], s[10:11] offset:{256*j} {(c.stv[gi] if c.stv else (c.stlast if (c.stlast is not None and gi == G-1) else c.st))}".rstrip())
                q.append(("s", gi, j))
        if c.wb and c.wb == (gi, "post"): emit_wb()
        if (not c.early) and gi + D < G:
            A("    s_nop 1")
            issue_loads(gi + D)
    if c.instr:
        A("""    s_memrealtime s[30:31]
    s_waitcnt vmcnt(0)
    s_memrealtime s[28:29]
    s_waitcnt lgkmcnt(0)
    v_and_b32 v1, 63, v0
    v_cmp_eq_u32 vcc, 0, v1
    s_and_saveexec_b64 s[36:37], vcc
    s_cbranch_execz L_done
    v_lshrrev_b32 v1, 6, v0
    s_lshl_b32 s38, s2, 4
    v_add_u32 v1, s38, v1
    v_lshlrev_b32 v1, 5, v1
    s_getreg_b32 s38, hwreg(HW_REG_HW_ID)
    s_getreg_b32 s39, hwreg(HW_REG_XCC_ID)
    v_mov_b32 v8, s20
    v_mov_b32 v9, s22
    v_mov_b32 v10, s24
    v_mov_b32 v11, s26
    v_mov_b32 v12, s30
    v_mov_b32 v13, s28
    v_mov_b32 v14, s38
    v_mov_b32 v15, s39
    global_store_dwordx4 v1, v[8:11], s[34:35]
    global_store_dwordx4 v1, v[12:15], s[34:35] offset:16""")
    A("L_done:")
    A("    s_endpgm")
    nv = max(OFF0 + G - 1, 16)
    acc = (nv + 3) // 4 * 4
    A('.section .rodata,"a"'); A(".p2align 6")
    A(f".amdhsa_kernel {NAME}_kernel")
    A(f"  .amdhsa_next_free_vgpr {nv}")
    A(f"  .amdhsa_next_free_sgpr {40 if c.instr else 24}")
    A(f"  .amdhsa_accum_offset {acc}")
    A("  .amdhsa_group_segment_fixed_size 0")
    A("  .amdhsa_kernarg_size 48")
    A("  .amdhsa_user_sgpr_count 2")
    A("  .amdhsa_user_sgpr_kernarg_segment_ptr 1")
    A("  .amdhsa_system_sgpr_workgroup_id_x 1")
    A("  .amdhsa_float_denorm_mode_32 3")
    A(".end_amdhsa_kernel")
    return "\n".join(L) + "\n"
```

```python
import math
from gen import NAME, HEADER

INSTR_TAIL = """    s_memrealtime s[30:31]
    s_waitcnt vmcnt(0)
    s_memrealtime s[28:29]
    s_waitcnt lgkmcnt(0)
    v_and_b32 v1, 63, v0
    v_cmp_eq_u32 vcc, 0, v1
    s_and_saveexec_b64 s[36:37], vcc
    s_cbranch_execz L_done
    v_lshrrev_b32 v1, 6, v0
    s_lshl_b32 s38, s2, 4
    v_add_u32 v1, s38, v1
    v_lshlrev_b32 v1, 5, v1
    s_getreg_b32 s38, hwreg(HW_REG_HW_ID)
    s_getreg_b32 s39, hwreg(HW_REG_XCC_ID)
    v_mov_b32 v8, s20
    v_mov_b32 v9, s22
    v_mov_b32 v10, s24
    v_mov_b32 v11, s26
    v_mov_b32 v12, s30
    v_mov_b32 v13, s28
    v_mov_b32 v14, s38
    v_mov_b32 v15, s39
    global_store_dwordx4 v1, v[8:11], s[34:35]
    global_store_dwordx4 v1, v[12:15], s[34:35] offset:16"""

class Cfg:
    def __init__(s, W=4, G=4, ld="", stv="nnnn", layout="grid", instr=False, nocompute=False, nostore=False,
                 bar=1, endbar=0, contig=False, sched=None, xcd=False, numa=False, flip=0, wstv=None, loc=None, align12=False, pretouch=0, late=None, early_k=0, early_pol="s"):
        s.__dict__.update(locals()); del s.__dict__['s']

P = {'p': '', 'n': 'nt', 's': 'sc1', 'S': 'sc0 sc1', 'N': 'sc1 nt'}

def gen(c):
    W, G = c.W, c.G
    rpb = W * 4 * G
    nblk = 16384 // rpb
    L = []; A = L.append
    A(HEADER.rstrip())
    A(f"; @launch grid=({nblk},1,1) block=({W*64},1,1) lds=0")
    A('.amdgcn_target "amdgcn-amd-amdhsa--gfx950"')
    A(".text"); A(f".globl {NAME}_kernel");
    if c.align12: A(".p2align 12")
    A(".p2align 8"); A(f".type {NAME}_kernel,@function")
    A(f"{NAME}_kernel:")
    if c.instr:
        A("    s_memrealtime s[20:21]")
        A("    s_load_dwordx4 s[32:35], s[0:1], 32")
    A("    s_load_dwordx8 s[4:11], s[0:1], 0      ; x, g, b, out")
    A(f"    s_cmp_ge_u32 s2, {nblk}")
    A("    s_cbranch_scc1 L_done")
    blk = "s2"
    if c.xcd:
        A("    s_and_b32 s16, s2, 7")
        A(f"    s_lshl_b32 s16, s16, {int(math.log2(nblk//8))}")
        A("    s_lshr_b32 s17, s2, 3")
        A("    s_or_b32 s16, s16, s17")
        blk = "s16"
    if c.layout == "grid":
        qb_shift = int(math.log2(W)); wmul = 1; gstride = 16384 // G
    elif c.layout == "gridx":
        gstride = 16384 // 8 // G
    elif c.layout == "blk":
        qb_shift = int(math.log2(W * G)); wmul = 1; gstride = W * 4
    elif c.layout == "wave":
        qb_shift = int(math.log2(W * G)); wmul = G; gstride = 4
    if c.layout == "gridx":
        A("    s_and_b32 s16, s2, 7")
        A("    s_lshl_b32 s3, s16, 11")
        A("    s_lshr_b32 s17, s2, 3")
        A(f"    s_lshl_b32 s17, s17, {int(math.log2(W*4))}")
        A("    s_add_u32 s3, s3, s17")
        wmul = 1
    else:
        A(f"    s_lshl_b32 s3, {blk}, {qb_shift + 2}")
    if wmul == 1:
        A("    v_lshrrev_b32 v1, 4, v0")
    else:
        A("    v_lshrrev_b32 v3, 6, v0")
        A("    v_bfe_u32 v1, v0, 4, 2")
        A(f"    v_lshl_add_u32 v1, v3, {int(math.log2(wmul*4))}, v1")
    A("    v_add_u32 v1, s3, v1")
    if c.contig:
        A("    v_and_b32 v3, 0xfffffffc, v1")
        A("    v_and_b32 v2, 63, v0")
        A("    v_lshlrev_b32 v2, 4, v2")
        A("    v_lshl_add_u32 v2, v3, 10, v2")
        jstep = 1024
    else:
        A("    v_and_b32 v2, 15, v0")
        A("    v_lshlrev_b32 v2, 4, v2")
        A("    v_lshl_add_u32 v2, v1, 10, v2")
        jstep = 256
    A("    v_and_b32 v1, 0x1ff, v1")
    A("    v_lshlrev_b32 v1, 1, v1")
    A("    s_mov_b32 s12, 0xffff0000")
    A("    s_mov_b32 s13, 0xbb000000              ; -1/512")
    A("    s_mov_b32 s14, 0x3b000000              ; 1/512")
    A("    s_mov_b32 s15, 0x3727c5ac              ; 1e-5")
    same_ch = (gstride % 512 == 0)
    NGB = 1 if same_ch else G
    GB = 4
    R0 = (GB + 2 * NGB + 3) // 4 * 4
    D0 = R0 + 16 * G
    T0 = D0 + 32
    OFF0 = T0 + 8
    OFF = [2] + [OFF0 + i for i in range(G - 1)]
    for gi in range(1, G):
        A(f"    v_add_u32 v{OFF[gi]}, {gi*gstride*1024}, v2")
    A("    s_waitcnt lgkmcnt(0)")
    if c.instr: A("    s_memrealtime s[22:23]")
    LOCG = OFF0 + G - 1
    if c.loc:
        A("    s_lshr_b32 s17, s2, 3")
        A("    s_lshl_b32 s17, s17, 2")
        A("    s_and_b32 s16, s2, 3")
        A("    s_or_b32 s17, s17, s16")
        A(f"    s_lshl_b32 s17, s17, {int(math.log2(W*4*2))}")
        A("    s_getreg_b32 s16, hwreg(HW_REG_XCC_ID)")
        A("    s_lshr_b32 s16, s16, 2")
        A("    s_lshr_b32 s18, s17, 11")
        A("    s_xor_b32 s16, s16, s18")
        A("    s_lshr_b32 s18, s32, 1")
        A("    s_xor_b32 s16, s16, s18")
        A("    s_and_b32 s16, s16, 1")
        A("    s_lshl_b32 s16, s16, 3")
        A("    s_add_u32 s17, s17, s16")
        A(f"    v_lshrrev_b32 v{LOCG}, 4, v0")
        A(f"    v_lshrrev_b32 v3, 3, v{LOCG}")
        A(f"    v_and_b32 v{LOCG}, 7, v{LOCG}")
        A(f"    v_lshl_add_u32 v{LOCG}, v3, 4, v{LOCG}")
        A(f"    v_add_u32 v{LOCG}, s17, v{LOCG}")
        A("    v_and_b32 v3, 15, v0")
        A("    v_lshlrev_b32 v3, 4, v3")
        A(f"    v_lshl_add_u32 v3, v{LOCG}, 10, v3")
        A(f"    v_and_b32 v{LOCG}, 0x1ff, v{LOCG}")
        A(f"    v_lshlrev_b32 v{LOCG}, 1, v{LOCG}")
        for gi in range(G):
            if c.loc[gi] == 'L':
                assert (gi*gstride) % 4096 == 0
                A(f"    v_add_u32 v{OFF[gi]}, {gi*gstride*1024}, v3")
    q = []
    def issue_loads(gi):
        R = R0 + 16 * gi
        for j in range(4):
            r = R + 4 * j
            A(f"    global_load_dwordx4 v[{r}:{r+3}], v{OFF[gi]}, s[4:5] offset:{jstep*j} {c.ld}".rstrip())
            q.append(("x", gi, j))
    def wait_for(tag):
        if tag not in q: return
        i = q.index(tag); n = len(q) - 1 - i
        A(f"    s_waitcnt vmcnt({n})")
        del q[:i+1]
    issue_loads(0)
    for gi in range(NGB):
        A(f"    global_load_ushort v{GB+2*gi}, v1, s[6:7] offset:{(gi*gstride*2)}")
        A(f"    global_load_ushort v{GB+2*gi+1}, v1, s[8:9] offset:{(gi*gstride*2)}")
        q.append(("g", gi)); q.append(("b", gi))
    if c.pretouch:
        for gi in range(G):
            A(f"    v_and_b32 v{T0+gi}, 0xfffff000, v{OFF[gi]}")
            A(f"    global_load_ubyte v3, v{T0+gi}, s[10:11]" + (" nt" if c.pretouch == 2 else ""))
            q.append(("t", gi))
    if c.loc:
        A(f"    global_load_ushort v6, v{LOCG}, s[6:7]")
        A(f"    global_load_ushort v7, v{LOCG}, s[8:9]")
        q.append(("g", 1)); q.append(("b", 1))
    for gi in range(1, G):
        if c.late and gi in c.late: continue
        if c.bar: A("    s_barrier")
        issue_loads(gi)
    if c.endbar: A("    s_barrier")
    def compute(gi):
        R = R0 + 16 * gi
        a0, a1 = T0, T0 + 2
        for j in range(4):
            wait_for(("x", gi, j))
            if c.instr and gi == 0 and j == 0: A("    s_memrealtime s[24:25]")
            if c.instr and gi == G-1 and j == 3: A("    s_memrealtime s[26:27]")
            if c.nocompute: continue
            for k in range(4):
                r = R + 4 * j + k; d = D0 + 2 * (4 * j + k)
                A(f"    v_lshlrev_b32 v{d}, 16, v{r}")
                A(f"    v_and_b32 v{d+1}, s12, v{r}")
            for k in range(4):
                d = D0 + 2 * (4 * j + k)
                acc = a0 if k % 2 == 0 else a1
                if j == 0 and k < 2: continue
                if j == 0:
                    dp = D0 + 2 * (k - 2)
                    A(f"    v_pk_add_f32 v[{acc}:{acc+1}], v[{dp}:{dp+1}], v[{d}:{d+1}]")
                else:
                    A(f"    v_pk_add_f32 v[{acc}:{acc+1}], v[{acc}:{acc+1}], v[{d}:{d+1}]")
        if c.nocompute: return
        A(f"    v_pk_add_f32 v[{a0}:{a0+1}], v[{a0}:{a0+1}], v[{a1}:{a1+1}]")
        A(f"    v_add_f32 v{a0}, v{a0}, v{a0+1}")
        for rot in (8, 4, 2, 1):
            A("    s_nop 1")
            A(f"    v_add_f32_dpp v{a0}, v{a0}, v{a0} row_ror:{rot} row_mask:0xf bank_mask:0xf")
        m = T0 + 4
        A(f"    v_mul_f32 v{m}, s13, v{a0}")
        for i in range(16):
            d = D0 + 2 * i
            A(f"    v_pk_add_f32 v[{d}:{d+1}], v[{d}:{d+1}], v[{m}:{m+1}] op_sel_hi:[1,0]")
        for i in range(16):
            d = D0 + 2 * i
            acc = a0 if i % 2 == 0 else a1
            if i < 2: A(f"    v_pk_mul_f32 v[{acc}:{acc+1}], v[{d}:{d+1}], v[{d}:{d+1}]")
            else: A(f"    v_pk_fma_f32 v[{acc}:{acc+1}], v[{d}:{d+1}], v[{d}:{d+1}], v[{acc}:{acc+1}]")
        A(f"    v_pk_add_f32 v[{a0}:{a0+1}], v[{a0}:{a0+1}], v[{a1}:{a1+1}]")
        A(f"    v_add_f32 v{a0}, v{a0}, v{a0+1}")
        for rot in (8, 4, 2, 1):
            A("    s_nop 1")
            A(f"    v_add_f32_dpp v{a0}, v{a0}, v{a0} row_ror:{rot} row_mask:0xf bank_mask:0xf")
        A(f"    v_mov_b32 v{a1}, s15")
        A(f"    v_fmac_f32 v{a1}, s14, v{a0}")
        A(f"    v_rsq_f32 v{a1}, v{a1}")
        gg = gi % NGB
        if c.loc and c.loc[gi] == 'L': gg = 1
        g, b = GB + 2 * gg, GB + 2 * gg + 1
        wait_for(("b", gg))
        sc, bb = T0 + 4, T0 + 6
        A(f"    v_lshlrev_b32 v{sc}, 16, v{g}")
        A(f"    v_lshlrev_b32 v{bb}, 16, v{b}")
        A(f"    v_mul_f32 v{sc}, v{a1}, v{sc}")
        for j in range(4):
            for k in range(4):
                d = D0 + 2 * (4 * j + k)
                A(f"    v_pk_fma_f32 v[{d}:{d+1}], v[{d}:{d+1}], v[{sc}:{sc+1}], v[{bb}:{bb+1}] op_sel_hi:[1,0,0]")
            for k in range(4):
                i = 4 * j + k; d = D0 + 2 * i
                A(f"    v_cvt_pk_bf16_f32 v{R+i}, v{d}, v{d+1}")
            if inline_store[0] is not None: store1(gi, j)
    inline_store = [None]
    def store1(gi, j, pol=None):
        if c.nostore: return
        r = R0 + 16 * gi + 4 * j
        A(f"    global_store_dwordx4 v{OFF[gi]}, v[{r}:{r+3}], s[10:11] offset:{jstep*j} {P[pol or c.stv[gi]]}".rstrip())
        q.append(("s", gi, j))
    sched = c.sched or "".join(f"C{g}" for g in range(G))
    toks = [sched[i:i+2] for i in range(0, len(sched), 2)]
    for t in toks:
        g = int(t[1])
        if t[0] == 'C':
            inline_store[0] = True
            compute(g)
            if c.nocompute:
                for j in range(4): store1(g, j)
            inline_store[0] = None
        elif t[0] == 'l': issue_loads(g)
        elif t[0] == 'f': wait_for(("x", g, 0))
        elif t[0] == 'e':
            for j in range(c.early_k): store1(g, j, c.early_pol)
        elif t[0] == 'r':
            for j in range(c.early_k, 4): store1(g, j)
        elif t[0] == 'b': A("    s_barrier")
        elif t[0] == 'w': wait_for(("x", g, 3))
        elif t[0] == 'c': compute(g)
        elif t[0] == 's':
            for j in range(4): store1(g, j)
    if c.instr: A(INSTR_TAIL)
    A("L_done:")
    A("    s_endpgm")
    nv = max(OFF0 + G, 16)
    acc = (nv + 3) // 4 * 4
    A('.section .rodata,"a"'); A(".p2align 6")
    A(f".amdhsa_kernel {NAME}_kernel")
    A(f"  .amdhsa_next_free_vgpr {nv}")
    A(f"  .amdhsa_next_free_sgpr {40 if c.instr else 24}")
    A(f"  .amdhsa_accum_offset {acc}")
    A("  .amdhsa_group_segment_fixed_size 0")
    A("  .amdhsa_kernarg_size 48")
    A("  .amdhsa_user_sgpr_count 2")
    A("  .amdhsa_user_sgpr_kernarg_segment_ptr 1")
    A("  .amdhsa_system_sgpr_workgroup_id_x 1")
    A("  .amdhsa_float_denorm_mode_32 3")
    A(".end_amdhsa_kernel")
    return "\n".join(L) + "\n"

def build(items):
    import subprocess, json
    V='variants/'
    names=[]
    for n,s in items:
        open(V+n+".s","w").write(s); names.append(V+n+".s")
    r=subprocess.run(["python3","mkco.py"]+names,capture_output=True,text=True)
    print(r.stdout, r.stderr)
    print(json.dumps(["bench/bench"]+[x.split(":")[0] for x in r.stdout.split()]))
```

```python
import math, re, subprocess, os, tempfile
from gen import NAME, HEADER
from gen3 import INSTR_TAIL, build, P

_sz = {}
def isize(t):
    t = t.split(';')[0].strip()
    if t.startswith(('s_cbranch', 's_branch')): return 4
    if t not in _sz:
        with tempfile.TemporaryDirectory() as d:
            open(d + "/a.s", "w").write('.amdgcn_target "amdgcn-amd-amdhsa--gfx950"\n.text\n' + t + "\n")
            r = subprocess.run(["llvm-mc", "-triple=amdgcn-amd-amdhsa", "-mcpu=gfx950", "-show-encoding", d + "/a.s"], capture_output=True, text=True)
            assert r.returncode == 0, r.stderr
            m = re.search(r"encoding: \[([^\]]*)\]", r.stdout)
            _sz[t] = len(m.group(1).split(","))
    return _sz[t]

class Cfg:
    def __init__(s, W=8, G=2, ld="", stv=None, instr=False, bar=1, endbar=1, mimic=True, align12=True,
                 prio=None, gbpos=0, touch=None, touchwave=0, spf=0, spf_pos=0, nostore=False, xmask=None):
        s.__dict__.update(locals()); del s.__dict__['s']

class Em:
    def __init__(s): s.L = []; s.off = 0; s.last4 = None; s.targets = []; s.nt = 0
    def raw(s, t): s.L.append(t)
    def __call__(s, t):
        if s.targets and s.off >= s.targets[0] and s.off % 8 == 0:
            s.targets.pop(0)
            nxt = f"L_touch{s.nt+1}" if s.targets else "L_back"
            s.L.append(f"L_touch{s.nt}:")
            s.L.append(f"    s_cbranch_scc1 {nxt}".ljust(77) + " ; instruction-cache warm-up hop (SCC is 0 on the main path)")
            s.L.append("    s_nop 0")
            s.nt += 1; s.off += 8; s.last4 = None
        n = isize(t)
        code, _, cm = t.partition(';')
        s.L.append(("    " + code.rstrip().ljust(72) + (" ; " + cm.strip() if cm else "")).rstrip())
        op = t.split()[0]
        if n == 4 and op.startswith('v_') and not op.startswith(('v_dot2c', 'v_readfirstlane', 'v_cmp')): s.last4 = len(s.L) - 1
        elif n == 8: s.last4 = None
        s.off += n
    def align8(s):
        if s.off % 8 == 0: return
        if s.last4 is not None:
            t = s.L[s.last4].strip(); op = t.split()[0]
            s.L[s.last4] = "    " + op + "_e64" + t[len(op):]
            s.last4 = None
        else:
            s.L.append("    s_nop 0")
        s.off += 4

DPP = "row_mask:0xf bank_mask:0xf"

def gen(c):
    W, G = c.W, c.G
    stv = c.stv or "n" * G
    rpb = W * 4 * G
    nblk = 16384 // rpb
    E = Em(); A = E
    for l in HEADER.rstrip().split("\n"): E.raw(l)
    E.raw(f"; @launch grid=({nblk},1,1) block=({W*64},1,1) lds=0")
    E.raw('.amdgcn_target "amdgcn-amd-amdhsa--gfx950"')
    E.raw(".text"); E.raw(f".globl {NAME}_kernel")
    if c.align12: E.raw(".p2align 12")
    E.raw(".p2align 8"); E.raw(f".type {NAME}_kernel,@function")
    E.raw(f"{NAME}_kernel:")
    if c.instr:
        A("s_memrealtime s[20:21]")
        A("s_load_dwordx4 s[32:35], s[0:1], 32")
    A("s_load_dwordx8 s[4:11], s[0:1], 0 ; x, g, b, out")
    A(f"s_cmpk_ge_u32 s2, {nblk}")
    A("s_cbranch_scc1 L_done")
    gstride = 16384 // G
    vG, vB, vMask = 4, 5, 6
    R0 = 8
    D0 = R0 + 16 * G
    T = D0 + 32
    vK, vS1, vQ, vT, vDl, vMu, vE, vS, vU = T, T+1, T+2, T+4, T+5, T+6, T+7, T+8, T+9
    vM = 3
    vOFF = [2] + [T + 10 + i for i in range(G - 1)]
    A(f"s_lshl_b32 s3, s2, {int(math.log2(W*4))}")
    A("v_lshrrev_b32 v1, 4, v0")
    A("v_add_u32 v1, s3, v1")
    A("v_and_b32 v2, 15, v0")
    A("v_lshlrev_b32 v2, 4, v2")
    A("v_lshl_add_u32 v2, v1, 10, v2")
    A("v_and_b32 v1, 0x1ff, v1 ; channel")
    A("v_lshlrev_b32 v1, 1, v1")
    for gi in range(1, G):
        A(f"v_add_u32 v{vOFF[gi]}, {hex(gi*gstride*1024)}, v2")
    A(f"v_mov_b32 v{vMask}, 0xffff0000")
    A("s_mov_b32 s12, 0x0000bf80")
    A("s_mov_b32 s13, 0xbf800000")
    A("s_mov_b32 s14, 0x3f803f80")
    A("s_mov_b32 s15, 0x3b000000 ; 1/512")
    A("s_mov_b32 s16, 0x3727c5ac ; 1e-5")
    if c.spf:
        A(f"v_readfirstlane_b32 s18, v{vOFF[G-1]}")
    if c.xmask is not None:
        A(f"s_and_b32 s19, s2, {c.xmask}")
        A("s_cbranch_scc1 L_done")
    if c.touch:
        A("v_readfirstlane_b32 s17, v0")
        A("s_nop 0")
        A(f"s_cmpk_eq_u32 s17, {c.touchwave*64}")
        A("s_cbranch_scc1 L_touch0")
        E.raw("L_back:")
        A("s_cmp_eq_u32 s17, -1")
        E.targets = list(c.touch)
    A("s_waitcnt lgkmcnt(0)")
    if c.instr: A("s_memrealtime s[22:23]")
    q = []
    def issue_loads(gi):
        for j in range(4):
            r = R0 + 16 * gi + 4 * j
            A(f"global_load_dwordx4 v[{r}:{r+3}], v{vOFF[gi]}, s[4:5] offset:{256*j} {c.ld}".rstrip())
            q.append(("x", gi, j))
    def wait_for(tag):
        if tag not in q: return False
        i = q.index(tag); n = len(q) - 1 - i
        A(f"s_waitcnt vmcnt({n})")
        del q[:i+1]
        return True
    def gb_loads():
        A(f"global_load_ushort v{vG}, v1, s[6:7]")
        A(f"global_load_ushort v{vB}, v1, s[8:9]")
        q.append("g"); q.append("b")
    if c.gbpos == -1: gb_loads()
    issue_loads(0)
    if c.gbpos == 0: gb_loads()
    if c.spf:
        A(f"s_add_u32 s18, s4, s18")
        A(f"s_addc_u32 s19, s5, 0")
        order = [(j, r, h) for j in (3, 2, 1, 0) for r in range(4) for h in range(2)] if c.spf_pos else [(j, r, h) for j in range(4) for r in range(4) for h in range(2)]
        for n, (j, r, h) in enumerate(order[:c.spf]):
            A(f"s_load_dword s{48 + (n % 16)}, s[18:19], {hex(r*1024 + j*256 + h*128)}")
        if c.touch: A("s_cmp_eq_u32 s17, -1")
    for gi in range(1, G):
        if c.bar: A("s_barrier")
        issue_loads(gi)
    if c.endbar: A("s_barrier")
    gb_done = [False]
    def store1(gi, j):
        if c.nostore: return
        r = R0 + 16 * gi + 4 * j
        A(f"global_store_dwordx4 v{vOFF[gi]}, v[{r}:{r+3}], s[10:11] offset:{256*j} {P[stv[gi*4+j] if len(stv) == 4*G else stv[gi]]}".rstrip())
        q.append(("s", gi, j))
    def compute(gi):
        R = R0 + 16 * gi
        def dot(i, h):
            return f"v_dot2_f32_bf16 v{D0+2*i+h}, v{R+i}, s{12+h}, v{vK}"
        def sq(i):
            d = D0 + 2 * i
            if i == 0: return f"v_pk_mul_f32 v[{vQ}:{vQ+1}], v[{d}:{d+1}], v[{d}:{d+1}]"
            return f"v_pk_fma_f32 v[{vQ}:{vQ+1}], v[{d}:{d+1}], v[{d}:{d+1}], v[{vQ}:{vQ+1}]"
        def sm(i): return f"v_dot2c_f32_bf16 v{vS1}, s14, v{R+i}"
        def red(v, rot): return f"v_add_f32_dpp v{v}, v{v}, v{v} row_ror:{rot} {DPP}"
        for j in range(4):
            wait_for(("x", gi, j))
            if c.instr and gi == 0 and j == 0: A("s_memrealtime s[24:25]")
            if c.instr and gi == G-1 and j == 3: A("s_memrealtime s[26:27]")
            b = 4 * j
            if j == 0:
                A(f"v_mov_b32 v{vS1}, 0")
                E.align8()
                A(f"v_and_b32_dpp v{vK}, v{R}, v{vMask} row_newbcast:0 {DPP}")
                for k in range(4): A(dot(b+k, 0)); A(dot(b+k, 1))
                for k in range(4): A(sm(b+k))
                for k in range(4): A(sq(b+k))
            elif j < 3:
                A(sm(b)); E.align8()
                for k in range(4): A(dot(b+k, 0)); A(dot(b+k, 1))
                A(sm(b+1)); A(sm(b+2))
                A(sq(b)); A(sq(b+1))
                A(sq(b+2)); A(sq(b+3))
                A(sm(b+3))
                if j == 2 and not gb_done[0]:
                    pass
            else:
                for k in range(4): A(sm(b+k))
                E.align8()
                A(dot(b, 0)); A(dot(b, 1)); A(dot(b+1, 0))
                A(red(vS1, 8))
                A(dot(b+1, 1)); A(dot(b+2, 0))
                A(red(vS1, 4))
                A(dot(b+2, 1)); A(dot(b+3, 0))
                A(red(vS1, 2))
                A(dot(b+3, 1)); A(sq(b))
                A(red(vS1, 1))
                A(sq(b+1)); A(sq(b+2)); A(sq(b+3))
        A(f"v_add_f32 v{vQ}, v{vQ}, v{vQ+1}")
        A(f"v_mul_f32 v{vM}, s15, v{vS1} ; mean")
        if c.mimic:
            F = [f"v_cvt_pk_bf16_f32 v{vMu}, 0, v{vM}",
                 None,
                 f"v_sub_f32 v{vDl}, v{vK}, v{vM} ; K - mean",
                 f"v_sub_f32 v{vE}, v{vMu}, v{vM}",
                 None,
                 f"v_mul_f32 v{vE}, v{vE}, v{vE}",
                 f"v_sub_f32 v{vMu}, v{vK}, v{vMu} ; K - mu",
                 None,
                 f"v_fma_f32 v{vE}, -v{vDl}, v{vDl}, v{vE}",
                 "GB0",
                 None]
        else:
            F = [f"v_sub_f32 v{vMu}, v{vK}, v{vM} ; K - mean",
                 None,
                 f"v_mov_b32 v{vE}, s16",
                 f"v_fma_f32 v{vE}, -v{vMu}, v{vMu}, v{vE}",
                 None, "s_nop 1", None, "GB0", "s_nop 0", None]
        rots = [8, 4, 2, 1]
        for f in F:
            if f is None:
                E.align8(); A(red(vQ, rots.pop(0)))
            elif f == "GB0":
                if not gb_done[0]:
                    wait_for("b")
                    A(f"v_lshlrev_b32 v{vG}, 16, v{vG}")
                    A(f"v_lshlrev_b32 v{vB}, 16, v{vB}")
                    gb_done[0] = True
                else: A("s_nop 0")
            else: A(f)
        A(f"v_fmac_f32 v{vE}, s15, v{vQ} ; variance" + (" about mu" if c.mimic else " + eps"))
        if c.mimic:
            A(f"v_cvt_pk_bf16_f32 v{vE}, 0, v{vE}")
            A(f"v_add_f32 v{vE}, s16, v{vE} ; + eps")
            A(f"v_cvt_pk_bf16_f32 v{vE}, 0, v{vE}")
            A(f"v_sqrt_f32 v{vE}, v{vE}")
            A(f"v_mul_f32 v{vU}, v{vMu}, v{vG} ; (K - mu) * g")
            A(f"v_cvt_pk_bf16_f32 v{vE}, 0, v{vE}")
            A(f"v_rcp_f32 v{vE}, v{vE}")
            A("s_nop 0")
        else:
            A(f"v_rsq_f32 v{vE}, v{vE}")
            A(f"v_mul_f32 v{vU}, v{vMu}, v{vG} ; (K - mean) * g")
        E.align8()
        A(f"v_mul_f32_e64 v{vS}, -v{vE}, v{vG} ; s = -g / sd")
        A(f"v_fma_f32 v{vT}, v{vE}, v{vU}, v{vB}")
        for j in range(4):
            for k in range(4):
                d = D0 + 2 * (4 * j + k)
                A(f"v_pk_fma_f32 v[{d}:{d+1}], v[{d}:{d+1}], v[{vS}:{vS+1}], v[{vT}:{vT+1}] op_sel_hi:[1,0,0]")
            for k in range(4):
                i = 4 * j + k; d = D0 + 2 * i
                A(f"v_cvt_pk_bf16_f32 v{R+i}, v{d}, v{d+1}")
            store1(gi, j)
    for gi in range(G):
        E.raw(f"    ; ---- group {gi} ----")
        if c.prio and gi == G - 1: A(f"s_setprio {c.prio}")
        compute(gi)
    if c.instr:
        for l in INSTR_TAIL.split("\n"): E.raw(l)
    E.raw("L_done:")
    A("s_endpgm")
    nv = T + 10 + G - 1
    acc = (nv + 3) // 4 * 4
    E.raw('.section .rodata,"a"'); E.raw(".p2align 6")
    E.raw(f".amdhsa_kernel {NAME}_kernel")
    E.raw(f"  .amdhsa_next_free_vgpr {nv}")
    E.raw(f"  .amdhsa_next_free_sgpr {64 if c.spf else (40 if c.instr else 24)}")
    E.raw(f"  .amdhsa_accum_offset {acc}")
    E.raw("  .amdhsa_group_segment_fixed_size 0")
    E.raw("  .amdhsa_kernarg_size 48")
    E.raw("  .amdhsa_user_sgpr_count 2")
    E.raw("  .amdhsa_user_sgpr_kernarg_segment_ptr 1")
    E.raw("  .amdhsa_system_sgpr_workgroup_id_x 1")
    E.raw("  .amdhsa_float_denorm_mode_32 3")
    E.raw(".end_amdhsa_kernel")
    return "\n".join(E.L) + "\n"

if __name__ == "__main__":
    it = [("k4_m", gen(Cfg())), ("k4_f", gen(Cfg(mimic=False))), ("ws_k4_m", gen(Cfg(instr=True))), ("ws_k4_f", gen(Cfg(mimic=False, instr=True)))]
    build(it)
```

```python
import sys
sys.path.insert(0,'work')
from gen4 import *
s = gen(Cfg(touch=[1088,1152,1216,1280], touchwave=7))
doc = """;
"""
i = s.index("; @launch")
j = s.index("\n", i) + 1
s = s[:j] + doc + s[j:]
open('standalone__instancenorm__sampling.s','w').write(s)
build([("final1", s)])
```
